```python
import torch

def _softmax(x, axis=-1):
    return torch.softmax(x, dim=axis)
def _gelu(x):
    return torch.nn.functional.gelu(x, approximate="tanh")
def _silu(x):
    return torch.nn.functional.silu(x)
def _sigmoid(x):
    return torch.sigmoid(x)
def _layernorm(x, axis=-1, eps=1e-5):
    m = x.mean(dim=axis, keepdim=True)
    v = x.var(dim=axis, keepdim=True, unbiased=False)
    return (x - m) / torch.sqrt(v + eps)
def _scatter_add(tgt, idx, src, axis=0):
    return tgt.clone().index_add_(axis, idx, src)
def _segment_sum(src, seg, n):
    out = torch.zeros((n,) + src.shape[1:], dtype=src.dtype)
    return out.index_add_(0, seg, src)
def _pad(x, pw):
    flat = tuple(v for pair in reversed(pw) for v in pair)
    return torch.nn.functional.pad(x, flat)

kernel_name = 'gated_mix__sliding_block__geglu_ffn__prompt'

def setup_inputs():

    _w = (lambda a: (lambda t: t.to(torch.bfloat16) if t.is_floating_point() else t)(torch.as_tensor(a)))
    def _A_setup():
        B, S, D = 1, 2048, 1024
        return {
            "x": _w((lambda *s: torch.randn(*s, dtype=torch.bfloat16) * 0.05)(B, S, D)),
            "wqkv": _w((lambda *s: torch.randn(*s, dtype=torch.bfloat16) * 1.6)(D, 3 * D)),
            "wo": _w((lambda *s: torch.randn(*s, dtype=torch.bfloat16) * 0.1)(D, D)),
        }
    _A_in = _A_setup()

    def _B_setup():
        B, S, D, F = 1, 2048, 1024, 3584
        return {
            "x": _w((lambda *s: torch.randn(*s, dtype=torch.bfloat16) * 0.05)(B, S, D)),
            "w_gate": _w((lambda *s: torch.randn(*s, dtype=torch.bfloat16) * 0.4)(D, F)),
            "w_up": _w((lambda *s: torch.randn(*s, dtype=torch.bfloat16) * 0.4)(D, F)),
            "w_down": _w((lambda *s: torch.randn(*s, dtype=torch.bfloat16) * 0.4)(F, D)),
        }
    _B_in = _B_setup()

    return {
        "A_x": _A_in["x"],
        "A_wqkv": _A_in["wqkv"],
        "A_wo": _A_in["wo"],
        "B_x": _B_in["x"],
        "B_w_gate": _B_in["w_gate"],
        "B_w_up": _B_in["w_up"],
        "B_w_down": _B_in["w_down"],
        "gate_w": _w((lambda *s: torch.randn(*s, dtype=torch.bfloat16) * 0.05)(1024) * 16.0),
    }

def reference(A_x, A_wqkv, A_wo, B_x, B_w_gate, B_w_up, B_w_down, gate_w):
    def _A_ref(x, wqkv, wo):
        B, S, D = x.shape
        H = 32; Dh = D // H; W = 256
        qkv = (lambda x, *d: x.permute(*d))((x @ wqkv).reshape(B, S, 3, H, Dh), 2, 0, 3, 1, 4)
        q, k, v = qkv[0], qkv[1], qkv[2]
        scores = torch.einsum("bhqd,bhkd->bhqk", q, k) * (Dh ** -0.5)
        idx = torch.arange(S)
        mask = (idx[:, None] - idx[None, :] >= 0) & (idx[:, None] - idx[None, :] < W)
        scores = torch.where(mask[None, None], scores, -1e9)
        p = _softmax(scores, axis=-1)
        o = torch.einsum("bhqk,bhkd->bhqd", p, v)
        return (lambda x, *d: x.permute(*d))(o, 0, 2, 1, 3).reshape(B, S, D) @ wo

    def _B_ref(x, w_gate, w_up, w_down):
        return (_gelu(x @ w_gate) * (x @ w_up)) @ w_down

    x = A_x
    g = _sigmoid((x * gate_w).sum(-1, keepdims=True))
    a = _A_ref(x, A_wqkv, A_wo)
    b = _B_ref(x, B_w_gate, B_w_up, B_w_down)
    return g * a + (1 - g) * b
```

```python
import sys, math

WS_Q = 0
WS_H = 16 << 20
WS_O = 32 << 20
WS_G = 40 << 20

class G:
    def __init__(self):
        self.L = []
        self.q = []
    def e(self, s):
        self.L.append("    " + s)
    def lab(self, s):
        self.L.append(s + ":")
    def c(self, s):
        self.L.append("    ; " + s)
    def lds(self, s, tag):
        self.e(s); self.q.append(tag)
    def need(self, tags, extra=""):
        idx = -1
        for i, t in enumerate(self.q):
            if t in tags: idx = i
        if idx < 0:
            if extra: self.e("s_waitcnt " + extra)
            return
        n = len(self.q) - 1 - idx
        n = min(n, 15)
        self.e(("s_waitcnt lgkmcnt(%d) " % n + extra).strip())
        self.q = self.q[len(self.q) - n:] if n else []
    def drain(self, extra=""):
        self.e(("s_waitcnt lgkmcnt(0) " + extra).strip())
        self.q = []
    def text(self):
        return "\n".join(self.L) + "\n"

def vr(b, n): return "v[%d:%d]" % (b, b + n - 1)
def sr(b, n): return "s[%d:%d]" % (b, b + n - 1)
def f32(x):
    import struct
    return "0x%08x" % struct.unpack("<I", struct.pack("<f", x))[0]

def stamp(g, P, idx, sreg):
    if P.get("PROF"):
        g.e("s_memtime %s" % sr(sreg + 2 * idx, 2))
        g.e("s_waitcnt lgkmcnt(0)")

def stamp_store(g, P, n, sreg, swave, sws, base):
    if P.get("PROF"):
        g.e("s_memtime %s" % sr(sreg + 2 * (n - 1), 2))
        g.e("s_lshl_b32 s%d, s2, 4" % (sreg + 2 * n))
        g.e("s_add_u32 s%d, s%d, s%d" % (sreg + 2 * n, sreg + 2 * n, swave))
        g.e("s_lshl_b32 s%d, s%d, 6" % (sreg + 2 * n, sreg + 2 * n))
        g.e("s_add_u32 s%d, s%d, %d" % (sreg + 2 * n, sreg + 2 * n, base))
        g.e("v_mov_b32 v1, s%d" % (sreg + 2 * n))
        g.e("s_waitcnt lgkmcnt(0)")
        for i in range(n):
            g.e("v_mov_b32 v2, s%d" % (sreg + 2 * i))
            g.e("global_store_dword v1, v2, %s offset:%d" % (sr(sws, 2), 4 * i))
            g.e("s_nop 1")

def kernel_head(g, name):
    g.L.append(".globl %s" % name)
    g.L.append(".p2align 8")
    g.L.append(".type %s,@function" % name)
    g.lab(name)

def kernel_desc(name, vgpr, sgpr=102):
    return """.amdhsa_kernel %s
  .amdhsa_next_free_vgpr %d
  .amdhsa_next_free_sgpr %d
  .amdhsa_accum_offset %d
  .amdhsa_group_segment_fixed_size 0
  .amdhsa_kernarg_size 88
  .amdhsa_user_sgpr_count 2
  .amdhsa_user_sgpr_kernarg_segment_ptr 1
  .amdhsa_system_sgpr_workgroup_id_x 1
.end_amdhsa_kernel
""" % (name, vgpr, sgpr, (vgpr + 3) // 4 * 4)

def gemm1(P):
    g = G()
    name = "gemm1_kernel"
    kernel_head(g, name)
    D = P.get("D", 4); R = D + 1
    NB = P.get("NB", 17)
    DPG = P.get("DPG", 2)
    vAoff = 10; vBad = 14; vAr = 24; vBr = 26
    vBring = 32; vA = 56; vAcc = 96
    assert vBring + 4 * R <= vA
    sX, sWq, sWg, sWu, sWs = 4, 6, 8, 10, 12
    sW, sNt, sMt, sAb, sMA, sMB, sInc, sCnt = 14, 15, 16, 18, 20, 21, 22, 32
    g.e("s_cmp_ge_u32 s2, 256")
    g.e("s_cbranch_scc1 L1_end")
    stamp(g, P, 0, 60)
    g.e("s_load_dwordx4 s[4:7], s[0:1], 0")
    g.e("s_load_dwordx4 s[8:11], s[0:1], 32")
    g.e("s_load_dwordx2 s[12:13], s[0:1], 80")
    g.e("v_lshrrev_b32 v1, 6, v0")
    g.e("v_and_b32 v0, 63, v0")
    g.e("s_nop 0")
    g.e("v_readfirstlane_b32 s14, v1")
    g.e("s_and_b32 s33, s2, 7")
    g.e("s_lshr_b32 s34, s2, 3")
    g.e("s_and_b32 s35, s34, 3")
    g.e("s_lshl_b32 s15, s33, 2")
    g.e("s_add_u32 s15, s15, s35")
    g.e("s_lshr_b32 s16, s34, 2")
    g.e("v_lshrrev_b32 v2, 3, v0")
    g.e("v_and_b32 v3, 7, v0")
    g.e("s_lshl_b32 s33, s14, 5")
    for a in range(4):
        g.e("s_add_u32 s34, s33, %d" % (8 * a))
        g.e("v_add_u32 v4, s34, v2")
        g.e("v_bfe_u32 v5, v4, 1, 3")
        g.e("v_xor_b32 v5, v5, v3")
        g.e("v_lshlrev_b32 v5, 4, v5")
        g.e("v_lshl_add_u32 v%d, v4, 11, v5" % (vAoff + a))
    g.e("s_lshl_b32 s20, s14, 12")
    g.e("s_mul_i32 s21, s14, 5120")
    g.e("s_add_u32 s21, s21, 65536")
    g.e("s_waitcnt lgkmcnt(0)")
    g.e("s_lshl_b32 s33, s16, 19")
    g.e("s_add_u32 s18, s4, s33")
    g.e("s_addc_u32 s19, s5, 0")
    g.e("s_mul_i32 s33, s15, 192")
    g.e("s_add_u32 s36, s6, s33"); g.e("s_addc_u32 s37, s7, 0")
    g.e("s_mul_i32 s33, s15, 224")
    g.e("s_add_u32 s38, s8, s33"); g.e("s_addc_u32 s39, s9, 0")
    g.e("s_add_u32 s40, s10, s33"); g.e("s_addc_u32 s41, s11, 0")
    g.e("s_sub_u32 s40, s40, 224"); g.e("s_subb_u32 s41, s41, 0")
    for s in range(768): assert (s * 43691) >> 19 == s // 12
    for s in range(1792): assert (s * 37450) >> 20 == s // 28
    g.e("s_mul_i32 s42, s14, 5")
    g.e("s_mov_b32 s52, 37450")
    g.e("s_mov_b32 s53, 7168")
    for t in range(5):
        g.e("s_add_u32 s43, s42, %d" % t)
        g.e("s_cmp_lt_u32 s43, 12")
        g.e("s_cselect_b32 s44, 0, 12")
        g.e("s_cselect_b32 s45, 43691, s52")
        g.e("s_cselect_b32 s46, 19, 20")
        g.e("s_cselect_b32 s47, 12, 28")
        g.e("s_cselect_b32 s48, 6144, s53")
        g.e("s_cselect_b32 s50, s36, s38")
        g.e("s_cselect_b32 s51, s37, s39")
        g.e("s_sub_u32 s43, s43, s44")
        g.e("s_lshl_b32 s43, s43, 6")
        g.e("v_add_u32 v4, s43, v0")
        g.e("v_mul_u32_u24 v5, s45, v4")
        g.e("v_lshrrev_b32 v5, s46, v5")
        g.e("v_mul_u32_u24 v6, s47, v5")
        g.e("v_sub_u32 v6, v4, v6")
        g.e("v_bfe_u32 v7, v5, 3, 1")
        g.e("v_lshlrev_b32 v7, 1, v7")
        g.e("v_xor_b32 v6, v6, v7")
        g.e("v_mul_u32_u24 v7, s48, v5")
        g.e("v_lshl_add_u32 v7, v6, 4, v7")
        g.e("v_cmp_le_u32 vcc, 14, v6")
        g.e("v_mov_b32 v8, s50"); g.e("v_mov_b32 v9, s51")
        g.e("v_mov_b32 v4, s40"); g.e("v_mov_b32 v5, s41")
        g.e("v_cndmask_b32 v8, v8, v4, vcc")
        g.e("v_cndmask_b32 v9, v9, v5, vcc")
        g.e("v_add_co_u32 v%d, vcc, v8, v7" % (vBad + 2 * t))
        g.e("s_nop 1")
        g.e("v_addc_co_u32 v%d, vcc, 0, v9, vcc" % (vBad + 2 * t + 1))
        g.e("s_lshl_b32 s%d, s48, 6" % (sInc + 2 * t))
        g.e("s_mov_b32 s%d, 0" % (sInc + 2 * t + 1))
    def dma_list(stage):
        ops = []
        for a in range(4):
            ops.append(["s_add_u32 m0, s20, %d" % (stage * 32768 + a * 1024),
                        "s_nop 0",
                        "global_load_lds_dwordx4 v%d, s[18:19]" % (vAoff + a)] +
                       (["s_add_u32 s18, s18, 128", "s_addc_u32 s19, s19, 0"] if a == 3 else []))
        for t in range(5):
            ops.append(["s_add_u32 m0, s21, %d" % (stage * 40960 + t * 1024),
                        "s_nop 0",
                        "global_load_lds_dwordx4 %s, off" % vr(vBad + 2 * t, 2),
                        "v_lshl_add_u64 %s, %s, 0, %s" % (vr(vBad + 2 * t, 2), vr(vBad + 2 * t, 2), sr(sInc + 2 * t, 2))])
        return [ops[4], ops[0], ops[5], ops[1], ops[6], ops[2], ops[7], ops[3], ops[8]]
    for st in range(2):
        for op in dma_list(st):
            for l in op: g.e(l)
    g.e("v_and_b32 v2, 15, v0")
    g.e("v_lshrrev_b32 v3, 4, v0")
    g.e("s_and_b32 s33, s14, 3")
    g.e("s_lshl_b32 s33, s33, 13")
    g.e("v_lshrrev_b32 v4, 1, v2")
    g.e("v_xor_b32 v4, v4, v3")
    g.e("v_lshlrev_b32 v4, 4, v4")
    g.e("v_lshl_add_u32 v4, v2, 7, v4")
    g.e("v_add_u32 v%d, s33, v4" % vAr)
    g.e("v_xor_b32 v%d, 64, v%d" % (vAr + 1, vAr))
    g.e("v_bfe_u32 v4, v0, 2, 2")
    g.e("v_lshl_add_u32 v4, v3, 3, v4")
    g.e("v_and_b32 v5, 3, v0")
    g.e("v_lshlrev_b32 v5, 3, v5")
    g.e("v_and_b32 v6, 1, v3")
    g.e("v_lshlrev_b32 v6, 5, v6")
    for reg, (rs, base) in enumerate([(192, 65536), (448, 65536 + 12288)]):
        g.e("v_mul_u32_u24 v7, %d, v4" % rs)
        g.e("v_add_u32 v7, v7, v5")
        g.e("v_add_u32 v7, %d, v7" % base)
        g.e("v_add_u32 v%d, v7, v6" % (vBr + 2 * reg))
        g.e("v_sub_u32 v%d, v7, v6" % (vBr + 2 * reg + 1))
    for i in range(160):
        g.e("v_mov_b32 v%d, 0" % (vAcc + i))
    g.e("s_cmp_ge_u32 s14, 4")
    g.e("s_cbranch_scc1 L1_h1")

    blocks = [[("G", 0), ("G", 1), ("G", 2), ("G", 3), ("G", 7), ("G", 8), ("G", 9), ("G", 10), ("Q", 0), ("Q", 1)],
              [("G", 4), ("G", 5), ("G", 6), ("G", 11), ("G", 12), ("G", 13), ("Q", 2), ("Q", 3), ("Q", 4), ("Q", 5)]]

    for half in range(2):
        if half == 1:
            g.lab("L1_h1")
        g.q = []
        bl = blocks[half]
        def rdA(stage, kk):
            for i in range(4):
                g.lds("ds_read_b128 %s, v%d offset:%d" % (vr(vA + 16 * kk + 4 * i, 4), vAr + kk, stage * 32768 + i * 2048), ("A", kk, i))
        def rdA1(stage, kk, i):
            g.lds("ds_read_b128 %s, v%d offset:%d" % (vr(vA + 16 * kk + 4 * i, 4), vAr + kk, stage * 32768 + i * 2048), ("A", kk, i))
        def rdB(stage, n):
            kk, j = divmod(n, 10)
            reg, jp = bl[j]
            rs = 192 if reg == "Q" else 448
            base = vBr + (0 if reg == "Q" else 2) + (jp & 1)
            return [(base, stage * 40960 + (32 * kk + 4 * h) * rs + jp * 32) for h in range(2)]
        ring = {"n": 0}
        def issueB(stage, n, gn):
            slot = gn % R
            for h, (base, off) in enumerate(rdB(stage, n)):
                g.lds("ds_read_b64_tr_b16 %s, v%d offset:%d" % (vr(vBring + 4 * slot + 2 * h, 2), base, off), ("B", gn % (R * 60), h))
        def step(stage, base_gn, dma, nxt, issued):
            dl = dma_list(stage) if dma else []
            after = False
            for n in range(20):
                kk, j = divmod(n, 10)
                if nxt and n == NB:
                    g.drain("vmcnt(0)")
                    g.e("s_barrier")
                    after = True
                    rdA(stage ^ 1, 0)
                lim = n + D
                while issued <= lim and (issued < 20 or (nxt and after)):
                    if issued < 20: issueB(stage, issued, base_gn + issued)
                    else: issueB(stage ^ 1, issued - 20, base_gn + issued)
                    issued += 1
                if 2 <= n < 6:
                    rdA1(stage, 1, n - 2)
                gn = base_gn + n
                for i in range(4):
                    g.need([("A", kk, i), ("B", gn % (R * 60), 0), ("B", gn % (R * 60), 1)])
                    acc = vAcc + 4 * (i * 10 + j)
                    g.e("v_mfma_f32_16x16x32_bf16 %s, %s, %s, %s" % (vr(acc, 4), vr(vBring + 4 * (gn % R), 4), vr(vA + 16 * kk + 4 * i, 4), vr(acc, 4)))
                    if after and dl and i < DPG:
                        for l in dl.pop(0): g.e(l)
                    elif (not after) and g.pend and i < DPG:
                        for l in g.pend.pop(0): g.e(l)
            g.pend = dl
            return issued - 20
        assert (40 % R) == 0, "ring must divide 40"
        g.e("s_waitcnt vmcnt(9)")
        g.e("s_barrier")
        stamp(g, P, 1, 60)
        rdA(0, 0)
        g.pend = []
        iss = 0
        while iss < D:
            issueB(0, iss, iss); iss += 1
        g.e("s_mov_b32 s32, 7")
        q0 = list(g.q)
        g.lab("L1_loop%d" % half)
        i1 = step(0, 0, True, True, iss)
        i2 = step(1, 20, True, True, i1)
        norm = lambda q: [(t[0], t[1] % 40 if t[0] == "B" else t[1], t[2]) for t in q]
        assert i2 == iss, (i2, iss)
        pend_end = g.pend
        assert norm(g.q) == norm(q0), (g.q, q0)
        for op in g.pend:
            for l in op: g.e(l)
        g.pend = []
        g.e("s_sub_u32 s32, s32, 1")
        g.e("s_cmp_lg_u32 s32, 0")
        g.e("s_cbranch_scc1 L1_loop%d" % half)
        g.q = list(q0)
        i1 = step(0, 0, False, True, iss)
        step(1, 20, False, False, i1)
        g.e("s_nop 7"); g.e("s_nop 7")
        stamp(g, P, 2, 60)
        npair = 4 if half == 0 else 3
        g.e("v_and_b32 v2, 15, v0")
        g.e("v_lshrrev_b32 v3, 4, v0")
        g.e("s_and_b32 s33, s14, 3")
        g.e("s_lshl_b32 s33, s33, 6")
        g.e("s_lshl_b32 s34, s16, 8")
        g.e("s_add_u32 s33, s33, s34")
        g.e("v_add_u32 v2, s33, v2")
        g.e("v_and_b32 v4, 1, v3")
        g.e("v_lshlrev_b32 v4, 5, v4")
        g.e("v_lshrrev_b32 v5, 1, v3")
        g.e("v_lshl_add_u32 v4, v5, 4, v4")
        g.e("v_lshlrev_b32 v5, 3, v3")
        g.e("s_mul_i32 s33, s15, 224")
        g.e("s_add_u32 s33, s33, %d" % WS_H)
        g.e("s_add_u32 s36, s12, s33"); g.e("s_addc_u32 s37, s13, 0")
        g.e("v_mul_u32_u24 v6, 7168, v2")
        g.e("v_add_u32 v7, v6, v5")
        g.e("v_add_u32 v6, v6, v4")
        g.e("s_mul_i32 s33, s15, %d" % (3 * 131072))
        g.e("s_add_u32 s38, s12, s33"); g.e("s_addc_u32 s39, s13, 0")
        g.e("v_lshl_add_u32 v8, v2, 6, v4")
        c1 = -2.0 * math.sqrt(2.0 / math.pi) * math.log2(math.e)
        c2 = c1 * 0.044715
        g.e("s_mov_b32 s40, %s" % f32(c1))
        g.e("s_mov_b32 s41, %s" % f32(c2))
        g.e("v_mov_b32 v9, s40")
        T = 32
        for i in range(4):
            hp = []
            for p in range(npair):
                ag = vAcc + 4 * (i * 10 + p)
                au = vAcc + 4 * (i * 10 + npair + p)
                xg, xu, t = T, T + 4, T + 8
                pk = T + 12
                out = T + 16 + 2 * p
                g.e("v_cvt_pk_bf16_f32 v%d, v%d, v%d" % (pk, ag, ag + 1))
                g.e("v_cvt_pk_bf16_f32 v%d, v%d, v%d" % (pk + 1, ag + 2, ag + 3))
                g.e("v_cvt_pk_bf16_f32 v%d, v%d, v%d" % (pk + 2, au, au + 1))
                g.e("v_cvt_pk_bf16_f32 v%d, v%d, v%d" % (pk + 3, au + 2, au + 3))
                for r in range(2):
                    g.e("v_lshlrev_b32 v%d, 16, v%d" % (xg + 2 * r, pk + r))
                    g.e("v_and_b32 v%d, 0xffff0000, v%d" % (xg + 2 * r + 1, pk + r))
                    g.e("v_lshlrev_b32 v%d, 16, v%d" % (xu + 2 * r, pk + 2 + r))
                    g.e("v_and_b32 v%d, 0xffff0000, v%d" % (xu + 2 * r + 1, pk + 2 + r))
                for r in range(4): g.e("v_mul_f32 v%d, v%d, v%d" % (t + r, xg + r, xg + r))
                for r in range(4): g.e("v_fma_f32 v%d, v%d, s41, v9" % (t + r, t + r))
                for r in range(4): g.e("v_mul_f32 v%d, v%d, v%d" % (t + r, t + r, xg + r))
                for r in range(4): g.e("v_exp_f32 v%d, v%d" % (t + r, t + r))
                for r in range(4): g.e("v_add_f32 v%d, 1.0, v%d" % (t + r, t + r))
                for r in range(4): g.e("v_rcp_f32 v%d, v%d" % (t + r, t + r))
                for r in range(4): g.e("v_mul_f32 v%d, v%d, v%d" % (t + r, t + r, xg + r))
                g.e("v_cvt_pk_bf16_f32 v%d, v%d, v%d" % (pk, t, t + 1))
                g.e("v_cvt_pk_bf16_f32 v%d, v%d, v%d" % (pk + 1, t + 2, t + 3))
                for r in range(2):
                    g.e("v_lshlrev_b32 v%d, 16, v%d" % (t + 2 * r, pk + r))
                    g.e("v_and_b32 v%d, 0xffff0000, v%d" % (t + 2 * r + 1, pk + r))
                for r in range(4): g.e("v_mul_f32 v%d, v%d, v%d" % (t + r, t + r, xu + r))
                g.e("v_cvt_pk_bf16_f32 v%d, v%d, v%d" % (out, t, t + 1))
                g.e("v_cvt_pk_bf16_f32 v%d, v%d, v%d" % (out + 1, t + 2, t + 3))
            jb0 = 0 if half == 0 else 4
            g.e("s_nop 1")
            for p in range(0, npair - 1, 2):
                o = T + 16 + 2 * p
                g.e("v_permlane16_swap_b32 v%d, v%d" % (o, o + 2))
                g.e("v_permlane16_swap_b32 v%d, v%d" % (o + 1, o + 3))
                g.e("global_store_dwordx4 v6, %s, s[36:37] offset:%d" % (vr(o, 4), (jb0 + p) * 32))
            if npair & 1:
                o = T + 16 + 2 * (npair - 1)
                g.e("global_store_dwordx2 v7, %s, s[36:37] offset:%d" % (vr(o, 2), (jb0 + npair - 1) * 32))
            nq = 10 - 2 * npair
            q0b = 0 if half == 0 else 2
            for p in range(0, nq, 2):
                o = T + 24 + 2 * p
                for s in range(2):
                    a = vAcc + 4 * (i * 10 + 2 * npair + p + s)
                    g.e("v_cvt_pk_bf16_f32 v%d, v%d, v%d" % (o + 2 * s, a, a + 1))
                    g.e("v_cvt_pk_bf16_f32 v%d, v%d, v%d" % (o + 2 * s + 1, a + 2, a + 3))
                g.e("s_nop 1")
                g.e("v_permlane16_swap_b32 v%d, v%d" % (o, o + 2))
                g.e("v_permlane16_swap_b32 v%d, v%d" % (o + 1, o + 3))
                u = (q0b + p) >> 1
                g.e("v_add_u32 v1, %d, v8" % (u * 131072))
                g.e("global_store_dwordx4 v1, %s, s[38:39]" % vr(o, 4))
            if i < 3:
                g.e("v_add_u32 v6, %d, v6" % (16 * 7168))
                g.e("v_add_u32 v7, %d, v7" % (16 * 7168))
                g.e("v_add_u32 v8, %d, v8" % (16 * 64))
                g.e("s_nop 1")
        if P.get("PROF"):
            g.e("s_waitcnt vmcnt(0)")
        stamp_store(g, P, 4, 60, 14, 12, 64 << 20)
        g.e("s_endpgm")
    g.lab("L1_end")
    g.e("s_endpgm")
    return g.text(), kernel_desc(name, 256), "; @launch kernel=%s grid=(256,1,1) block=(512,1,1) lds=147456" % name

def attn(P):
    g = G()
    name = "attn_kernel"
    kernel_head(g, name)
    vQ, vK, vS, vP = 8, 16, 88, 156
    vT = 228
    g.e("s_cmp_ge_u32 s2, 512")
    g.e("s_cbranch_scc1 L2_end")
    stamp(g, P, 0, 60)
    g.e("s_load_dwordx2 s[4:5], s[0:1], 0")
    g.e("s_load_dwordx2 s[6:7], s[0:1], 56")
    g.e("s_load_dwordx2 s[12:13], s[0:1], 80")
    g.e("v_lshrrev_b32 v1, 6, v0")
    g.e("v_and_b32 v0, 63, v0")
    g.e("s_nop 0")
    g.e("v_readfirstlane_b32 s14, v1")
    g.e("s_and_b32 s33, s2, 7")
    g.e("s_lshr_b32 s34, s2, 3")
    g.e("s_and_b32 s35, s34, 3")
    g.e("s_lshl_b32 s15, s33, 2")
    g.e("s_add_u32 s15, s15, s35")
    g.e("s_lshr_b32 s16, s34, 2")
    g.e("s_lshl_b32 s17, s16, 7")
    g.e("s_lshl_b32 s18, s14, 5")
    g.e("s_add_u32 s18, s18, s17")
    g.e("v_and_b32 v2, 15, v0")
    g.e("v_lshrrev_b32 v3, 4, v0")
    g.e("v_lshlrev_b32 v4, 4, v3")
    g.e("s_waitcnt lgkmcnt(0)")
    g.e("s_lshl_b32 s33, s15, 17")
    g.e("s_add_u32 s20, s12, s33"); g.e("s_addc_u32 s21, s13, 0")
    g.e("s_add_u32 s22, s20, %d" % (32 << 17)); g.e("s_addc_u32 s23, s21, 0")
    g.e("s_add_u32 s24, s20, %d" % (64 << 17)); g.e("s_addc_u32 s25, s21, 0")
    g.e("v_add_u32 v5, s18, v2")
    g.e("v_lshl_add_u32 v5, v5, 6, v4")
    g.e("global_load_dwordx4 %s, v5, s[20:21]" % vr(vQ, 4))
    g.e("global_load_dwordx4 %s, v5, s[20:21] offset:1024" % vr(vQ + 4, 4))
    g.e("s_sub_u32 s19, s18, 256")
    g.e("v_add_u32 v5, s19, v2")
    for b in range(18):
        g.e("v_add_u32 v6, %d, v5" % (16 * b))
        g.e("v_max_i32 v6, 0, v6")
        g.e("v_lshl_add_u32 v6, v6, 6, v4")
        g.e("global_load_dwordx4 %s, v6, s[22:23]" % vr(vK + 4 * b, 4))
    g.e("v_lshrrev_b32 v5, 2, v0")
    g.e("v_and_b32 v6, 3, v0")
    g.e("v_bfe_u32 v7, v0, 4, 1")
    g.e("v_lshlrev_b32 v7, 1, v7")
    g.e("v_xor_b32 v6, v6, v7")
    g.e("v_lshlrev_b32 v6, 4, v6")
    g.e("s_mul_i32 s33, s14, 96")
    g.e("s_add_u32 s33, s33, s17")
    g.e("s_sub_u32 s33, s33, 256")
    g.e("v_add_u32 v5, s33, v5")
    g.e("s_mul_i32 s26, s14, 6144")
    for n in range(6):
        g.e("v_add_u32 v7, %d, v5" % (16 * n))
        g.e("v_max_i32 v7, 0, v7")
        g.e("v_lshl_add_u32 v7, v7, 6, v6")
        g.e("s_add_u32 m0, s26, %d" % (n * 1024))
        g.e("s_nop 0")
        g.e("global_load_lds_dwordx4 v7, s[24:25]")
    g.e("s_lshl_b32 s33, s2, 2")
    g.e("s_add_u32 s27, s33, s14")
    g.e("s_lshl_b32 s33, s27, 11")
    g.e("s_add_u32 s28, s4, s33"); g.e("s_addc_u32 s29, s5, 0")
    g.e("v_lshlrev_b32 v5, 5, v0")
    gx, gw = vS, vS + 8
    g.e("global_load_dwordx4 %s, v5, s[28:29]" % vr(gx, 4))
    g.e("global_load_dwordx4 %s, v5, s[28:29] offset:16" % vr(gx + 4, 4))
    g.e("global_load_dwordx4 %s, v5, s[6:7]" % vr(gw, 4))
    g.e("global_load_dwordx4 %s, v5, s[6:7] offset:16" % vr(gw + 4, 4))
    g.e("v_lshlrev_b32 v5, 2, v3")
    for r in range(4):
        g.e("v_add_u32 v6, %d, v5" % r)
        g.e("v_cmp_gt_u32 %s, v6, v2" % sr(40 + 2 * r, 2))
        g.e("v_cmp_le_u32 %s, v6, v2" % sr(48 + 2 * r, 2))
    g.e("v_bfe_u32 v5, v0, 2, 2")
    g.e("v_lshl_add_u32 v5, v3, 2, v5")
    g.e("s_lshl_b32 s33, s14, 5")
    g.e("v_add_u32 v5, s33, v5")
    g.e("v_lshlrev_b32 v5, 6, v5")
    g.e("v_and_b32 v6, 3, v0")
    g.e("v_lshl_add_u32 v5, v6, 3, v5")
    g.e("v_and_b32 v6, 1, v3")
    g.e("v_lshlrev_b32 v6, 5, v6")
    g.e("v_add_u32 v1, v5, v6")
    g.e("v_sub_u32 v7, v5, v6")
    g.e("v_add_u32 v7, 32, v7")
    scale = 32 ** -0.5
    g.e("s_mov_b32 s30, %s" % f32(scale)); g.e("s_mov_b32 s31, s30")
    g.e("s_mov_b32 s36, %s" % f32(math.log2(math.e))); g.e("s_mov_b32 s37, s36")
    g.e("v_mov_b32 v%d, 0xf149f2ca" % (vT + 0))
    g.e("s_waitcnt vmcnt(0)")
    acc = vT + 1; t0 = vT + 2
    g.e("v_mov_b32 v%d, 0" % acc)
    for d in range(8):
        g.e("v_lshlrev_b32 v%d, 16, v%d" % (t0, gx + d))
        g.e("v_and_b32 v%d, 0xffff0000, v%d" % (t0 + 1, gx + d))
        g.e("v_lshlrev_b32 v%d, 16, v%d" % (t0 + 2, gw + d))
        g.e("v_and_b32 v%d, 0xffff0000, v%d" % (t0 + 3, gw + d))
        g.e("v_mul_f32 v%d, v%d, v%d" % (t0, t0, t0 + 2))
        g.e("v_mul_f32 v%d, v%d, v%d" % (t0 + 1, t0 + 1, t0 + 3))
        g.e("v_cvt_pk_bf16_f32 v%d, 0, v%d" % (t0, t0))
        g.e("v_cvt_pk_bf16_f32 v%d, 0, v%d" % (t0 + 1, t0 + 1))
        g.e("v_add_f32 v%d, v%d, v%d" % (acc, acc, t0))
        g.e("v_add_f32 v%d, v%d, v%d" % (acc, acc, t0 + 1))
    for off in (0x041F, 0x081F, 0x101F, 0x201F):
        g.e("ds_swizzle_b32 v%d, v%d offset:0x%x" % (t0, acc, off))
        g.e("s_waitcnt lgkmcnt(0)")
        g.e("v_add_f32 v%d, v%d, v%d" % (acc, acc, t0))
    def xreduce(reg, tmp, op):
        g.e("v_mov_b32 v%d, v%d" % (tmp, reg))
        g.e("s_nop 1")
        g.e("v_permlane16_swap_b32 v%d, v%d" % (tmp, reg))
        g.e("s_nop 1")
        g.e("%s v%d, v%d, v%d" % (op, reg, reg, tmp))
        g.e("v_mov_b32 v%d, v%d" % (tmp, reg))
        g.e("s_nop 1")
        g.e("v_permlane32_swap_b32 v%d, v%d" % (tmp, reg))
        g.e("s_nop 1")
        g.e("%s v%d, v%d, v%d" % (op, reg, reg, tmp))
    xreduce(acc, t0, "v_add_f32")
    g.e("v_cvt_pk_bf16_f32 v%d, 0, v%d" % (acc, acc))
    g.e("v_mul_f32 v%d, %s, v%d" % (acc, f32(-math.log2(math.e)), acc))
    g.e("v_exp_f32 v%d, v%d" % (acc, acc))
    g.e("s_nop 0")
    g.e("v_add_f32 v%d, 1.0, v%d" % (acc, acc))
    g.e("v_rcp_f32 v%d, v%d" % (acc, acc))
    g.e("s_nop 0")
    g.e("v_cvt_pk_bf16_f32 v%d, 0, v%d" % (acc, acc))
    g.e("s_lshl_b32 s33, s27, 2")
    g.e("s_add_u32 s33, s33, %d" % WS_G)
    g.e("v_mov_b32 v%d, s33" % t0)
    g.e("v_cmp_eq_u32 vcc, 0, v0")
    g.e("s_and_saveexec_b64 s[38:39], vcc")
    g.e("global_store_dword v%d, v%d, s[12:13]" % (t0, acc))
    g.e("s_mov_b64 exec, s[38:39]")
    stamp(g, P, 1, 60)
    for s in range(2):
        for b in range(17):
            g.e("v_mfma_f32_16x16x32_bf16 %s, %s, %s, 0" % (vr(vS + 4 * b, 4), vr(vK + 4 * (b + s), 4), vr(vQ + 4 * s, 4)))
        g.e("s_nop 7")
        for b in range(17):
            S = vS + 4 * b
            for r in range(4): g.e("v_cvt_pk_bf16_f32 v%d, 0, v%d" % (S + r, S + r))
            for r in (0, 2): g.e("v_pk_mul_f32 %s, %s, s[30:31]" % (vr(S + r, 2), vr(S + r, 2)))
            for r in range(4): g.e("v_cvt_pk_bf16_f32 v%d, 0, v%d" % (S + r, S + r))
            if b == 0:
                for r in range(4): g.e("v_cndmask_b32 v%d, v%d, v%d, %s" % (S + r, vT, S + r, sr(40 + 2 * r, 2)))
            if b == 16:
                for r in range(4): g.e("v_cndmask_b32 v%d, v%d, v%d, %s" % (S + r, vT, S + r, sr(48 + 2 * r, 2)))
        g.e("s_cmp_ge_i32 s19, 0")
        g.e("s_cbranch_scc1 L2_nn%d" % s)
        for b in range(16):
            g.e("s_cmp_ge_i32 s19, %d" % (-16 * (b + s)))
            g.e("s_cbranch_scc1 L2_nn%d" % s)
            for r in range(4): g.e("v_mov_b32 v%d, v%d" % (vS + 4 * b + r, vT))
        g.lab("L2_nn%d" % s)
        m = vT + 2; tmp = vT + 4
        g.e("v_max3_f32 v%d, v%d, v%d, v%d" % (m, vS, vS + 1, vS + 2))
        g.e("v_max_f32 v%d, v%d, v%d" % (m, m, vS + 3))
        for i in range(4, 68, 2):
            g.e("v_max3_f32 v%d, v%d, v%d, v%d" % (m, m, vS + i, vS + i + 1))
        xreduce(m, tmp, "v_max_f32")
        g.e("v_mul_f32 v%d, %s, v%d" % (m, f32(-math.log2(math.e)), m))
        g.e("v_mov_b32 v%d, v%d" % (m + 1, m))
        for i in range(0, 68, 2):
            g.e("v_pk_fma_f32 %s, %s, s[36:37], %s" % (vr(vS + i, 2), vr(vS + i, 2), vr(m, 2)))
        for i in range(68):
            g.e("v_exp_f32 v%d, v%d" % (vS + i, vS + i))
        sm = vT + 6
        g.e("s_nop 0")
        g.e("v_pk_add_f32 %s, %s, %s" % (vr(sm, 2), vr(vS, 2), vr(vS + 2, 2)))
        for i in range(4, 68, 2):
            g.e("v_pk_add_f32 %s, %s, %s" % (vr(sm, 2), vr(sm, 2), vr(vS + i, 2)))
        g.e("v_add_f32 v%d, v%d, v%d" % (sm, sm, sm + 1))
        xreduce(sm, tmp, "v_add_f32")
        g.e("v_rcp_f32 v%d, v%d" % (sm, sm))
        g.e("s_nop 0")
        g.e("v_mov_b32 v%d, v%d" % (sm + 1, sm))
        Pb = vP + 36 * s
        for b in range(17):
            S = vS + 4 * b
            for r in (0, 2): g.e("v_pk_mul_f32 %s, %s, %s" % (vr(S + r, 2), vr(S + r, 2), vr(sm, 2)))
            g.e("v_cvt_pk_bf16_f32 v%d, v%d, v%d" % (Pb + 2 * (b + s), S, S + 1))
            g.e("v_cvt_pk_bf16_f32 v%d, v%d, v%d" % (Pb + 2 * (b + s) + 1, S + 2, S + 3))
        z = Pb + (34 if s == 0 else 0)
        g.e("v_mov_b32 v%d, 0" % z); g.e("v_mov_b32 v%d, 0" % (z + 1))
    stamp(g, P, 2, 60)
    g.e("s_barrier")
    vV = vK
    for kp in range(9):
        for db in range(2):
            for h in range(2):
                g.lds("ds_read_b64_tr_b16 %s, v%d offset:%d" % (vr(vV + 8 * kp + 4 * db + 2 * h, 2), 1 if db == 0 else 7, (32 * kp + 16 * h) * 64), ("V", kp, db, h))
    vO = vS
    for kp in range(9):
        for db in range(2):
            g.need([("V", kp, db, 0), ("V", kp, db, 1)])
            for s in range(2):
                o = vO + 8 * s + 4 * db
                g.e("v_mfma_f32_16x16x32_bf16 %s, %s, %s, %s" % (vr(o, 4), vr(vV + 8 * kp + 4 * db, 4), vr(vP + 36 * s + 4 * kp, 4), "0" if kp == 0 else vr(o, 4)))
    g.e("s_nop 7")
    g.e("v_and_b32 v4, 1, v3")
    g.e("v_lshlrev_b32 v4, 5, v4")
    g.e("v_lshrrev_b32 v5, 1, v3")
    g.e("v_lshl_add_u32 v4, v5, 4, v4")
    g.e("v_add_u32 v5, s18, v2")
    g.e("v_lshl_add_u32 v5, v5, 11, v4")
    g.e("s_lshl_b32 s33, s15, 6")
    g.e("s_add_u32 s33, s33, %d" % WS_O)
    g.e("s_add_u32 s20, s12, s33"); g.e("s_addc_u32 s21, s13, 0")
    for s in range(2):
        o = vO + 8 * s; d = vT + 4 * s
        for i in range(4):
            g.e("v_cvt_pk_bf16_f32 v%d, v%d, v%d" % (d + i, o + 2 * i, o + 2 * i + 1))
        g.e("s_nop 1")
        g.e("v_permlane16_swap_b32 v%d, v%d" % (d, d + 2))
        g.e("v_permlane16_swap_b32 v%d, v%d" % (d + 1, d + 3))
        if s == 1:
            g.e("v_add_u32 v5, %d, v5" % (16 * 2048))
        g.e("global_store_dwordx4 v5, %s, s[20:21]" % vr(d, 4))
    if P.get("PROF"):
        g.e("s_waitcnt vmcnt(0)")
    stamp_store(g, P, 4, 60, 14, 12, 65 << 20)
    g.lab("L2_end")
    g.e("s_endpgm")
    return g.text(), kernel_desc(name, 240), "; @launch kernel=%s grid=(512,1,1) block=(256,1,1) lds=24576" % name

def gemm2(P):
    g = G()
    name = "gemm2_kernel"
    kernel_head(g, name)
    vAo, vAh, vBo = 10, 14, 18
    vAr, vBr = 20, 24
    vG = 26
    vF = 32
    vAccA, vAccB = 128, 160
    NS = 36
    g.e("s_cmp_ge_u32 s2, 256")
    g.e("s_cbranch_scc1 L3_end")
    stamp(g, P, 0, 60)
    g.e("s_load_dwordx2 s[4:5], s[0:1], 16")
    g.e("s_load_dwordx2 s[6:7], s[0:1], 48")
    g.e("s_load_dwordx2 s[8:9], s[0:1], 64")
    g.e("s_load_dwordx2 s[12:13], s[0:1], 80")
    g.e("v_lshrrev_b32 v1, 6, v0")
    g.e("v_and_b32 v0, 63, v0")
    g.e("s_nop 0")
    g.e("v_readfirstlane_b32 s14, v1")
    g.e("s_and_b32 s33, s2, 7")
    g.e("s_lshr_b32 s34, s2, 3")
    g.e("s_lshr_b32 s35, s33, 1")
    g.e("s_lshl_b32 s35, s35, 2")
    g.e("s_and_b32 s36, s34, 3")
    g.e("s_add_u32 s16, s35, s36")
    g.e("s_and_b32 s35, s33, 1")
    g.e("s_lshl_b32 s35, s35, 3")
    g.e("s_lshr_b32 s36, s34, 2")
    g.e("s_add_u32 s15, s35, s36")
    g.e("s_and_b32 s17, s14, 1")
    g.e("s_bfe_u32 s18, s14, 0x10001")
    g.e("s_lshr_b32 s19, s14, 2")
    g.e("v_lshrrev_b32 v2, 4, v0")
    g.e("v_and_b32 v3, 15, v0")
    g.e("s_lshl_b32 s33, s14, 4")
    for a in range(4):
        g.e("s_add_u32 s34, s33, %d" % (4 * a))
        g.e("v_add_u32 v4, s34, v2")
        g.e("v_and_b32 v5, 15, v4")
        g.e("v_xor_b32 v5, v5, v3")
        g.e("v_lshlrev_b32 v5, 4, v5")
        g.e("v_lshl_add_u32 v%d, v4, 11, v5" % (vAo + a))
        g.e("v_mul_u32_u24 v4, 7168, v4")
        g.e("v_add_u32 v%d, v4, v5" % (vAh + a))
    g.e("v_lshrrev_b32 v2, 3, v0")
    g.e("v_and_b32 v3, 7, v0")
    for b in range(2):
        g.e("s_add_u32 s34, s33, %d" % (8 * b))
        g.e("v_add_u32 v4, s34, v2")
        g.e("v_bfe_u32 v5, v4, 1, 1")
        g.e("v_bfe_u32 v6, v4, 3, 1")
        g.e("v_lshl_add_u32 v5, v6, 1, v5")
        g.e("v_lshlrev_b32 v5, 1, v5")
        g.e("v_xor_b32 v5, v5, v3")
        g.e("v_lshlrev_b32 v5, 4, v5")
        g.e("v_lshl_add_u32 v%d, v4, 11, v5" % (vBo + b))
    g.e("s_lshl_b32 s20, s14, 12")
    g.e("s_lshl_b32 s21, s14, 11")
    g.e("s_add_u32 s21, s21, 98304")
    g.e("s_waitcnt lgkmcnt(0)")
    g.e("s_lshl_b32 s33, s16, 18")
    g.e("s_add_u32 s33, s33, %d" % WS_O)
    g.e("s_add_u32 s22, s12, s33"); g.e("s_addc_u32 s23, s13, 0")
    g.e("s_mul_i32 s33, s16, %d" % (128 * 7168))
    g.e("s_add_u32 s33, s33, %d" % WS_H)
    g.e("s_add_u32 s24, s12, s33"); g.e("s_addc_u32 s25, s13, 0")
    g.e("s_lshl_b32 s33, s15, 7")
    g.e("s_add_u32 s26, s4, s33"); g.e("s_addc_u32 s27, s5, 0")
    g.e("s_add_u32 s28, s6, s33"); g.e("s_addc_u32 s29, s7, 0")
    g.e("v_and_b32 v2, 15, v0")
    g.e("v_lshrrev_b32 v3, 4, v0")
    g.e("s_lshl_b32 s33, s16, 7")
    g.e("s_lshl_b32 s34, s17, 6")
    g.e("s_add_u32 s33, s33, s34")
    g.e("s_lshl_b32 s34, s19, 5")
    g.e("s_add_u32 s30, s33, s34")
    g.e("v_add_u32 v4, s30, v2")
    g.e("v_lshlrev_b32 v4, 2, v4")
    g.e("v_add_u32 v4, %d, v4" % WS_G)
    g.e("global_load_dword v%d, v4, s[12:13]" % vG)
    g.e("global_load_dword v%d, v4, s[12:13] offset:64" % (vG + 1))
    def dma_list(u):
        slot = u % 3
        isA = u < 8
        sa = 22 if isA else 24
        sb = 26 if isA else 28
        va = vAo if isA else vAh
        ops = []
        for a in range(4):
            ops.append(["s_add_u32 m0, s20, %d" % (slot * 32768 + a * 1024), "s_nop 0",
                        "global_load_lds_dwordx4 v%d, %s" % (va + a, sr(sa, 2))] +
                       (["s_add_u32 s%d, s%d, 256" % (sa, sa), "s_addc_u32 s%d, s%d, 0" % (sa + 1, sa + 1)] if a == 3 else []))
        for b in range(2):
            ops.append(["s_add_u32 m0, s21, %d" % (slot * 16384 + b * 1024), "s_nop 0",
                        "global_load_lds_dwordx4 v%d, %s" % (vBo + b, sr(sb, 2))] +
                       (["s_add_u32 s%d, s%d, 262144" % (sb, sb), "s_addc_u32 s%d, s%d, 0" % (sb + 1, sb + 1)] if b == 1 else []))
        return ops
    for u in range(3):
        for op in dma_list(u):
            for l in op: g.e(l)
    g.e("s_lshl_b32 s33, s19, 3")
    g.e("v_add_u32 v4, s33, v3")
    g.e("v_xor_b32 v4, v4, v2")
    g.e("v_lshlrev_b32 v4, 4, v4")
    g.e("v_lshl_add_u32 v4, v2, 8, v4")
    g.e("s_lshl_b32 s33, s17, 14")
    g.e("v_add_u32 v%d, s33, v4" % vAr)
    g.e("v_xor_b32 v%d, 64, v%d" % (vAr + 1, vAr))
    g.e("v_add_u32 v%d, 65536, v%d" % (vAr + 2, vAr))
    g.e("v_add_u32 v%d, 65536, v%d" % (vAr + 3, vAr + 1))
    g.e("v_bfe_u32 v4, v0, 2, 2")
    g.e("v_lshl_add_u32 v5, v3, 3, v4")
    g.e("s_lshl_b32 s33, s19, 6")
    g.e("v_add_u32 v5, s33, v5")
    g.e("v_lshlrev_b32 v5, 7, v5")
    g.e("v_and_b32 v6, 3, v0")
    g.e("v_lshl_add_u32 v5, v6, 3, v5")
    g.e("v_add_u32 v5, 98304, v5")
    g.e("v_lshrrev_b32 v4, 1, v4")
    g.e("v_and_b32 v6, 1, v3")
    g.e("v_lshl_add_u32 v4, v6, 1, v4")
    g.e("s_lshl_b32 s33, s18, 1")
    for j in range(2):
        g.e("s_add_u32 s34, s33, %d" % j)
        g.e("v_xor_b32 v6, s34, v4")
        g.e("v_lshl_add_u32 v%d, v6, 5, v5" % (vBr + j))
    for i in range(64):
        g.e("v_mov_b32 v%d, 0" % (vAccA + i))
    def reads(u):
        slot = u % 3; st = vF + 48 * (u & 1)
        ops = []
        for e in range(2):
            for i in range(4):
                base = vAr + e + (2 if slot == 2 else 0)
                off = (slot % 2 if slot < 2 else 0) * 32768 + i * 4096
                ops.append(("ds_read_b128 %s, v%d offset:%d" % (vr(st + 24 * e + 4 * i, 4), base, off), ("A", u, e, i)))
            for j in range(2):
                for h in range(2):
                    ops.append(("ds_read_b64_tr_b16 %s, v%d offset:%d" % (vr(st + 24 * e + 16 + 4 * j + 2 * h, 2), vBr + j, slot * 16384 + (32 * e + 4 * h) * 128), ("B", u, e, j, h)))
        return ops
    g.e("s_waitcnt vmcnt(12)")
    g.e("s_barrier")
    stamp(g, P, 1, 60)
    for l, t in reads(0): g.lds(l, t)
    for t in range(NS):
        extra = []
        if t + 1 < NS:
            g.drain("vmcnt(%d)" % (6 if t + 2 < NS else 0))
            g.e("s_barrier")
            rd = [("r", x) for x in reads(t + 1)]
            dm = [("d", x) for x in dma_list(t + 3)] if t + 3 < NS else []
            extra = []
            while rd or dm:
                if dm: extra.append(dm.pop(0))
                for _ in range(3):
                    if rd: extra.append(rd.pop(0))
        else:
            g.drain()
        acc = vAccA if t < 8 else vAccB
        st = vF + 48 * (t & 1)
        per = P.get("G2PER", 2)
        for e in range(2):
            for j in range(2):
                for i in range(4):
                    a = acc + 4 * (i * 2 + j)
                    g.e("v_mfma_f32_16x16x32_bf16 %s, %s, %s, %s" % (vr(a, 4), vr(st + 24 * e + 16 + 4 * j, 4), vr(st + 24 * e + 4 * i, 4), vr(a, 4)))
                    for _ in range(per):
                        if extra:
                            k, x = extra.pop(0)
                            if k == "r": g.lds(x[0], x[1])
                            else:
                                for l in x: g.e(l)
        for k, x in extra:
            if k == "r": g.lds(x[0], x[1])
            else:
                for l in x: g.e(l)
    stamp(g, P, 2, 60)
    g.e("s_nop 7")
    g.e("s_lshl_b32 s33, s14, 13")
    g.e("v_lshlrev_b32 v4, 4, v0")
    g.e("v_add_u32 v5, s33, v4")
    g.e("s_xor_b32 s33, s33, 32768")
    g.e("v_add_u32 v6, s33, v4")
    g.e("s_cmp_eq_u32 s19, 0")
    g.e("s_cbranch_scc0 L3_k1")
    for wk in range(2):
        if wk == 1: g.lab("L3_k1")
        own = [0, 1] if wk == 0 else [2, 3]
        oth = [2, 3] if wk == 0 else [0, 1]
        n = 0
        for acc in (vAccA, vAccB):
            for i in oth:
                for j in range(2):
                    g.e("ds_write_b128 v5, %s offset:%d" % (vr(acc + 4 * (i * 2 + j), 4), n * 1024)); n += 1
        g.e("s_waitcnt lgkmcnt(0)")
        g.e("s_barrier")
        n = 0
        for x in range(8):
            g.e("ds_read_b128 %s, v6 offset:%d" % (vr(vF + 4 * x, 4), x * 1024))
        g.e("v_and_b32 v7, 1, v3")
        g.e("v_lshlrev_b32 v7, 5, v7")
        g.e("v_lshrrev_b32 v8, 1, v3")
        g.e("v_lshl_add_u32 v7, v8, 4, v7")
        g.e("v_add_u32 v8, s30, v2")
        g.e("v_lshl_add_u32 v7, v8, 11, v7")
        g.e("s_lshl_b32 s33, s15, 7")
        g.e("s_lshl_b32 s34, s18, 6")
        g.e("s_add_u32 s33, s33, s34")
        g.e("s_add_u32 s8, s8, s33"); g.e("s_addc_u32 s9, s9, 0")
        g.e("v_sub_f32 v%d, 1.0, v%d" % (vG + 2, vG))
        g.e("v_sub_f32 v%d, 1.0, v%d" % (vG + 3, vG + 1))
        g.e("v_cvt_pk_bf16_f32 v%d, 0, v%d" % (vG + 2, vG + 2))
        g.e("v_cvt_pk_bf16_f32 v%d, 0, v%d" % (vG + 3, vG + 3))
        g.e("s_waitcnt lgkmcnt(0)")
        for ii, i in enumerate(own):
            d = vF + 40 + 4 * ii
            for j in range(2):
                a = vAccA + 4 * (i * 2 + j); b = vAccB + 4 * (i * 2 + j)
                pa = vF + 4 * (ii * 2 + j); pb = vF + 16 + 4 * (ii * 2 + j)
                for r in range(4):
                    g.e("v_add_f32 v%d, v%d, v%d" % (a + r, a + r, pa + r))
                    g.e("v_add_f32 v%d, v%d, v%d" % (b + r, b + r, pb + r))
                for r in range(4):
                    g.e("v_cvt_pk_bf16_f32 v%d, 0, v%d" % (a + r, a + r))
                    g.e("v_cvt_pk_bf16_f32 v%d, 0, v%d" % (b + r, b + r))
                for r in range(4):
                    g.e("v_mul_f32 v%d, v%d, v%d" % (a + r, a + r, vG + ii))
                    g.e("v_mul_f32 v%d, v%d, v%d" % (b + r, b + r, vG + 2 + ii))
                for r in range(4):
                    g.e("v_cvt_pk_bf16_f32 v%d, 0, v%d" % (a + r, a + r))
                    g.e("v_cvt_pk_bf16_f32 v%d, 0, v%d" % (b + r, b + r))
                for r in range(4):
                    g.e("v_add_f32 v%d, v%d, v%d" % (a + r, a + r, b + r))
                g.e("v_cvt_pk_bf16_f32 v%d, v%d, v%d" % (d + 2 * j, a, a + 1))
                g.e("v_cvt_pk_bf16_f32 v%d, v%d, v%d" % (d + 2 * j + 1, a + 2, a + 3))
            g.e("s_nop 1")
            g.e("v_permlane16_swap_b32 v%d, v%d" % (d, d + 2))
            g.e("v_permlane16_swap_b32 v%d, v%d" % (d + 1, d + 3))
            if ii == 1:
                g.e("v_add_u32 v7, %d, v7" % (16 * 2048))
            g.e("global_store_dwordx4 v7, %s, s[8:9]" % vr(d, 4))
        if P.get("PROF"):
            g.e("s_waitcnt vmcnt(0)")
        stamp_store(g, P, 4, 60, 14, 12, 66 << 20)
        g.e("s_endpgm")
    g.lab("L3_end")
    g.e("s_endpgm")
    return g.text(), kernel_desc(name, 192), "; @launch kernel=%s grid=(256,1,1) block=(512,1,1) lds=147456" % name

def build(P, which):
    parts = []
    for w in which:
        parts.append(globals()[w](P))
    s = "; generated by dev/gen.py\n"
    for p in parts: s += p[2] + "\n"
    s += '.amdgcn_target "amdgcn-amd-amdhsa--gfx950"\n.text\n'
    for p in parts: s += p[0]
    s += '.section .rodata,"a"\n.p2align 6\n'
    for p in parts: s += ".p2align 6\n" + p[1]
    return s

if __name__ == "__main__":
    out = sys.argv[1]
    which = sys.argv[2].split(",")
    P = {}
    for a in sys.argv[3:]:
        k, v = a.split("="); P[k] = int(v)
    open(out, "w").write(build(P, which))
```
